```python
import torch

def _softmax(x, axis=-1):
    return torch.softmax(x, dim=axis)
def _gelu(x):
    return torch.nn.functional.gelu(x, approximate="tanh")
def _silu(x):
    return torch.nn.functional.silu(x)
def _sigmoid(x):
    return torch.sigmoid(x)
def _layernorm(x, axis=-1, eps=1e-5):
    m = x.mean(dim=axis, keepdim=True)
    v = x.var(dim=axis, keepdim=True, unbiased=False)
    return (x - m) / torch.sqrt(v + eps)
def _scatter_add(tgt, idx, src, axis=0):
    return tgt.clone().index_add_(axis, idx, src)
def _segment_sum(src, seg, n):
    out = torch.zeros((n,) + src.shape[1:], dtype=src.dtype)
    return out.index_add_(0, seg, src)
def _pad(x, pw):
    flat = tuple(v for pair in reversed(pw) for v in pair)
    return torch.nn.functional.pad(x, flat)

kernel_name = 'concat_heads__gqa_block_cached__mha_block_cached__near_ridge'

def setup_inputs():

    _w = (lambda a: (lambda t: t.to(torch.bfloat16) if t.is_floating_point() else t)(torch.as_tensor(a)))
    def _A_setup():
        B, Sq, D = 8, 288, 640
        Hq, Hkv, Sk, Dh = 32, 32, 1024, 128
        assert Hq % Hkv == 0, (Hq, Hkv)
        return {
            "x": _w((lambda *s: torch.randn(*s, dtype=torch.bfloat16) * 0.8)(B, Sq, D)),
            "k_cache": _w((lambda *s: torch.randn(*s, dtype=torch.bfloat16) * 0.8)(B, Hkv, Sk, Dh)),
            "v_cache": _w((lambda *s: torch.randn(*s, dtype=torch.bfloat16) * 0.05)(B, Hkv, Sk, Dh)),
            "wq": _w((lambda *s: torch.randn(*s, dtype=torch.bfloat16) * 0.8)(D, Hq * Dh) * (D ** -0.5)),
            "wo": _w((lambda *s: torch.randn(*s, dtype=torch.bfloat16) * 0.05)(Hq * Dh, D) * ((Hq * Dh) ** -0.5)),
        }
    _A_in = _A_setup()

    def _B_setup():
        B, Sq, D = 8, 288, 640
        H, Sk, Dh = 32, 1024, 128
        return {
            "x": _w((lambda *s: torch.randn(*s, dtype=torch.bfloat16) * 0.8)(B, Sq, D)),
            "k_cache": _w((lambda *s: torch.randn(*s, dtype=torch.bfloat16) * 0.8)(B, H, Sk, Dh)),
            "v_cache": _w((lambda *s: torch.randn(*s, dtype=torch.bfloat16) * 0.05)(B, H, Sk, Dh)),
            "wq": _w((lambda *s: torch.randn(*s, dtype=torch.bfloat16) * 0.8)(D, H * Dh) * (D ** -0.5)),
            "wo": _w((lambda *s: torch.randn(*s, dtype=torch.bfloat16) * 0.05)(H * Dh, D) * ((H * Dh) ** -0.5)),
        }
    _B_in = _B_setup()

    return {
        "A_x": _A_in["x"],
        "A_k_cache": _A_in["k_cache"],
        "A_v_cache": _A_in["v_cache"],
        "A_wq": _A_in["wq"],
        "A_wo": _A_in["wo"],
        "B_x": _B_in["x"],
        "B_k_cache": _B_in["k_cache"],
        "B_v_cache": _B_in["v_cache"],
        "B_wq": _B_in["wq"],
        "B_wo": _B_in["wo"],
    }

def reference(A_x, A_k_cache, A_v_cache, A_wq, A_wo, B_x, B_k_cache, B_v_cache, B_wq, B_wo):
    def _A_ref(x, k_cache, v_cache, wq, wo):
        B, Sq, D = x.shape
        Hq, Dh = 32, 128
        Hkv = k_cache.shape[1]
        rep = Hq // Hkv
        q = (lambda x, *d: x.permute(*d))((x @ wq).reshape(B, Sq, Hq, Dh), 0, 2, 1, 3)
        k = (lambda x, n, axis: torch.repeat_interleave(x, n, dim=axis))(k_cache, rep, axis=1)
        v = (lambda x, n, axis: torch.repeat_interleave(x, n, dim=axis))(v_cache, rep, axis=1)
        scores = torch.einsum("bhqd,bhkd->bhqk", q, k) * (Dh ** -0.5)
        p = _softmax(scores, axis=-1)
        o = torch.einsum("bhqk,bhkd->bhqd", p, v)
        return (lambda x, *d: x.permute(*d))(o, 0, 2, 1, 3).reshape(B, Sq, Hq * Dh) @ wo

    def _B_ref(x, k_cache, v_cache, wq, wo):
        B, Sq, D = x.shape
        H, Dh = 32, 128
        q = (lambda x, *d: x.permute(*d))((x @ wq).reshape(B, Sq, H, Dh), 0, 2, 1, 3)
        scores = torch.einsum("bhqd,bhkd->bhqk", q, k_cache) * (Dh ** -0.5)
        p = _softmax(scores, axis=-1)
        o = torch.einsum("bhqk,bhkd->bhqd", p, v_cache)
        return (lambda x, *d: x.permute(*d))(o, 0, 2, 1, 3).reshape(B, Sq, H * Dh) @ wo

    a = _A_ref(A_x, A_k_cache, A_v_cache, A_wq, A_wo)
    b = _B_ref(B_x, B_k_cache, B_v_cache, B_wq, B_wo)
    return torch.concatenate([a, b], axis=-1)
```

```python
import re

class R:
    __slots__ = ("t", "i", "n")
    def __init__(self, t, i, n=1):
        self.t, self.i, self.n = t, i, n
    def __str__(self):
        if self.n == 1:
            return f"{self.t}{self.i}"
        return f"{self.t}[{self.i}:{self.i+self.n-1}]"
    __repr__ = __str__
    def __getitem__(self, k):
        if isinstance(k, slice):
            a = k.start or 0
            b = k.stop if k.stop is not None else self.n
            assert 0 <= a < b <= self.n, (a, b, self.n)
            return R(self.t, self.i + a, b - a)
        assert 0 <= k < self.n, (k, self.n)
        return R(self.t, self.i + k, 1)
    def sub(self, off, n):
        assert off + n <= self.n, (off, n, self.n)
        return R(self.t, self.i + off, n)
    def regs(self):
        return {(self.t, self.i + k) for k in range(self.n)}

def V(i, n=1): return R("v", i, n)
def A(i, n=1): return R("a", i, n)
def S(i, n=1): return R("s", i, n)

def regs_of(*ops):
    s = set()
    for o in ops:
        if isinstance(o, R):
            s |= o.regs()
        elif isinstance(o, str):
            if o == "vcc": s |= {("s", 106), ("s", 107)}
            elif o == "m0": s.add(("s", 124))
            elif o == "exec": s |= {("s", 126), ("s", 127)}
    return s

class Ins:
    __slots__ = ("text", "kind", "rd", "wr", "passes", "srcc", "wait_vm", "wait_lgkm", "nops", "vm_n", "lgkm_n", "dst_async", "comment", "cost")
    def __init__(self, text, kind, rd=(), wr=(), passes=0, srcc=None):
        self.text, self.kind = text, kind
        self.rd, self.wr = set(rd), set(wr)
        self.passes = passes
        self.srcc = srcc
        self.wait_vm = None
        self.wait_lgkm = None
        self.nops = 0
        self.vm_n = None
        self.lgkm_n = None
        self.dst_async = set()
        self.comment = ""
        self.cost = 4

def f(x):
    return str(x)

def mfma32(D, Aop, Bop, C):
    c = regs_of(C)
    i = Ins(f"v_mfma_f32_32x32x16_bf16 {D}, {Aop}, {Bop}, {f(C)}", "mfma", regs_of(Aop, Bop, C), regs_of(D), passes=8, srcc=c)
    i.cost = 8
    return i
def mfma16(D, Aop, Bop, C):
    c = regs_of(C)
    i = Ins(f"v_mfma_f32_16x16x32_bf16 {D}, {Aop}, {Bop}, {f(C)}", "mfma", regs_of(Aop, Bop, C), regs_of(D), passes=4, srcc=c)
    i.cost = 8
    return i

def valu(op, dst, *srcs, extra="", kind="valu", rd_dst=False):
    wr = regs_of(dst)
    rd = regs_of(*srcs)
    if rd_dst: rd |= wr
    txt = f"{op} {f(dst)}" + "".join(f", {f(s)}" for s in srcs) + (" " + extra if extra else "")
    return Ins(txt, kind, rd, wr)
def trans(op, dst, src):
    i = valu(op, dst, src, kind="trans"); i.cost = 8
    return i
def v_exp(d, s): return trans("v_exp_f32", d, s)
def v_rcp(d, s): return trans("v_rcp_f32", d, s)
def v_add_f32(d, a, b): return valu("v_add_f32", d, a, b)
def v_sub_f32(d, a, b): return valu("v_sub_f32", d, a, b)
def v_mul_f32(d, a, b): return valu("v_mul_f32", d, a, b)
def v_max_f32(d, a, b): return valu("v_max_f32", d, a, b)
def v_max3(d, a, b, c): return valu("v_max3_f32", d, a, b, c)
def v_mov(d, a): return valu("v_mov_b32", d, a)
def cvt_pk(d, a, b): return valu("v_cvt_pk_bf16_f32", d, a, b)
def acc_rd(d, a): return valu("v_accvgpr_read_b32", d, a)
def acc_wr(d, a): return valu("v_accvgpr_write_b32", d, a)
def v_cmp(op, a, b):
    return Ins(f"{op} vcc, {f(a)}, {f(b)}", "valu", regs_of(a, b), regs_of("vcc"))
def permswap(a, b):
    return Ins(f"v_permlane32_swap_b32 {a}, {b}", "perm", regs_of(a, b), regs_of(a, b))
def rfl(sd, v):
    return Ins(f"v_readfirstlane_b32 {sd}, {v}", "rfl", regs_of(v), regs_of(sd))

def salu(op, dst, *srcs, scc=True):
    wr = regs_of(dst) if dst is not None else set()
    rd = regs_of(*srcs)
    ops = ([f(dst)] if dst is not None else []) + [f(s) for s in srcs]
    return Ins(f"{op} " + ", ".join(ops), "salu", rd, wr)
def s_mov(d, a): return salu("s_mov_b32", d, a)
def s_add(d, a, b): return salu("s_add_u32", d, a, b)
def raw(text, kind="salu", rd=(), wr=()):
    return Ins(text, kind, rd, wr)

def ds_read(width, dst, addr, off=0):
    op = {128: "ds_read_b128", 64: "ds_read_b64", 32: "ds_read_b32", "tr": "ds_read_b64_tr_b16"}[width]
    assert 0 <= off < 65536, off
    i = Ins(f"{op} {dst}, {addr}" + (f" offset:{off}" if off else ""), "lds", regs_of(addr), set())
    i.dst_async = regs_of(dst)
    return i
def ds_write(width, addr, src, off=0):
    op = {128: "ds_write_b128", 64: "ds_write_b64", 32: "ds_write_b32"}[width]
    assert 0 <= off < 65536, off
    return Ins(f"{op} {addr}, {src}" + (f" offset:{off}" if off else ""), "lds", regs_of(addr, src), set())

def buf_load(width, dst, voff, srd, soff, off=0, flags=""):
    op = {4: "buffer_load_dwordx4", 2: "buffer_load_dwordx2", 1: "buffer_load_dword"}[width]
    assert 0 <= off < 4096, off
    i = Ins(f"{op} {dst}, {voff}, {srd}, {f(soff)} offen" + (f" offset:{off}" if off else "") + (" " + flags if flags else ""),
            "vmem", regs_of(voff, srd, soff), set())
    i.dst_async = regs_of(dst)
    return i
def buf_store(width, src, voff, srd, soff, off=0, flags=""):
    op = {4: "buffer_store_dwordx4", 2: "buffer_store_dwordx2", 1: "buffer_store_dword"}[width]
    assert 0 <= off < 4096, off
    i = Ins(f"{op} {src}, {voff}, {srd}, {f(soff)} offen" + (f" offset:{off}" if off else "") + (" " + flags if flags else ""),
            "vmem", regs_of(src, voff, srd, soff), set())
    i.comment = "store%d" % width
    i.srcc = regs_of(src) if width >= 3 else None
    return i
def dma(voff, srd, soff, off=0, flags=""):
    assert 0 <= off < 4096, off
    return Ins(f"buffer_load_dwordx4 {voff}, {srd}, {f(soff)} offen" + (f" offset:{off}" if off else "") + (" " + flags if flags else "") + " lds",
               "dma", regs_of(voff, srd, soff, "m0"), set())

def wait(vm=None, lgkm=None):
    p = []
    if vm is not None: p.append(f"vmcnt({vm})")
    if lgkm is not None: p.append(f"lgkmcnt({lgkm})")
    i = Ins("s_waitcnt " + " ".join(p), "wait")
    i.vm_n, i.lgkm_n = vm, lgkm
    return i
def barrier(): return Ins("s_barrier", "barrier")
def nop(n):
    i = Ins(f"s_nop {n-1}", "nop"); i.passes = n
    return i
def label(name): return Ins(f"{name}:", "label")
def comment(t): return Ins(f"; {t}", "label")
def branch(op, target): return Ins(f"{op} {target}", "branch")

class Loop:
    def __init__(self, body): self.body = body

def expand(seq):
    out = []
    for x in seq:
        if isinstance(x, Loop):
            b = expand(x.body)
            out += b + b
        elif isinstance(x, list):
            out += expand(x)
        else:
            out.append(x)
    return out
def flatten(seq):
    out = []
    for x in seq:
        if isinstance(x, Loop): out += flatten(x.body)
        elif isinstance(x, list): out += flatten(x)
        else: out.append(x)
    return out

VALU_KINDS = ("valu", "trans", "perm", "rfl")

def analyze(seq):
    lin = expand(seq)
    for it in range(50):
        changed = False
        lg = []
        vm = []
        for ins in lin:
            if ins.kind == "label":
                continue
            def apply(q, n):
                if n is not None and len(q) > n:
                    del q[:len(q) - n]
            touched = ins.rd | ins.wr | ins.dst_async
            for q, attr, cap in ((lg, "wait_lgkm", 15), (vm, "wait_vm", 63)):
                apply(q, getattr(ins, attr))
                need = None
                for idx in range(len(q) - 1, -1, -1):
                    if q[idx] & touched:
                        need = len(q) - 1 - idx
                        break
                if need is not None:
                    need = min(need, cap)
                    cur = getattr(ins, attr)
                    if cur is None or need < cur:
                        setattr(ins, attr, need); changed = True
                    apply(q, need)
            if ins.kind == "wait":
                apply(lg, ins.lgkm_n); apply(vm, ins.vm_n)
            elif ins.kind == "lds":
                lg.append(set(ins.dst_async))
            elif ins.kind in ("vmem", "dma"):
                vm.append(set(ins.dst_async))
            elif ins.kind == "reset":
                pass
        hist = []
        pos = 0
        for ins in lin:
            if ins.kind == "label":
                continue
            pre = ins.nops + (1 if (ins.wait_vm is not None or ins.wait_lgkm is not None) else 0)
            p = pos + pre
            need = 0
            for (h, hp) in hist:
                d = p - hp - 1
                req = 0
                if h.kind == "mfma":
                    tab_valu = {4: 8, 8: 12}[h.passes]
                    tab_ovl = {4: 6, 8: 10}[h.passes]
                    if ins.kind == "mfma":
                        ab = (ins.rd - (ins.srcc or set()))
                        if h.wr & ab: req = max(req, tab_valu)
                        if ins.srcc and (h.wr & ins.srcc):
                            if not (h.wr == ins.srcc and h.passes == ins.passes): req = max(req, tab_ovl)
                        if (h.wr & ins.wr) and not (h.wr == ins.wr and ins.srcc == h.wr):
                            req = max(req, tab_ovl)
                    else:
                        if h.wr & (ins.rd | ins.wr | ins.dst_async): req = max(req, tab_valu)
                        if ins.kind in VALU_KINDS and h.srcc and (h.srcc & ins.wr):
                            req = max(req, {4: 3, 8: 7}[h.passes])
                elif h.kind in VALU_KINDS:
                    vw = {r for r in h.wr if r[0] in "va"}
                    sw = {r for r in h.wr if r[0] == "s"}
                    if ins.kind == "mfma" and (vw & ins.rd): req = max(req, 2)
                    if h.kind == "trans" and ins.kind in VALU_KINDS + ("mfma", "lds", "vmem") and (vw & ins.rd): req = max(req, 1)
                    if ins.kind == "rfl" and (vw & ins.rd): req = max(req, 1)
                    if ins.kind == "perm" and (vw & ins.rd): req = max(req, 2)
                    if sw:
                        if ins.kind in ("vmem", "dma") and (sw & ins.rd): req = max(req, 5)
                        if ins.kind in VALU_KINDS and (sw & ins.rd): req = max(req, 2)
                        if ins.kind in ("salu", "branch") and (sw & ins.rd): req = max(req, 1)
                elif h.kind == "salu":
                    if ins.kind == "dma" and ("s", 124) in h.wr: req = max(req, 1)
                elif h.kind == "vmem" and h.srcc:
                    if ins.kind in VALU_KINDS and (h.srcc & ins.wr): req = max(req, 2)
                    elif h.srcc & (ins.wr | ins.dst_async): req = max(req, 1)
                if req > d:
                    need = max(need, req - d)
            if need:
                ins.nops += need; changed = True
                p += need
            w = ins.passes if ins.kind == "nop" else 1
            hist.append((ins, p + w - 1))
            pos = p + w
            hist = [(h, hp) for (h, hp) in hist if pos - hp < 24]
        if not changed:
            break
    else:
        raise RuntimeError("analysis did not converge")

def render(seq):
    out = []
    for ins in flatten(seq):
        if ins.kind == "label":
            out.append(ins.text); continue
        if ins.nops:
            n = ins.nops
            while n > 0:
                k = min(n, 16); out.append(f"    s_nop {k-1}"); n -= k
        if ins.wait_vm is not None or ins.wait_lgkm is not None:
            p = []
            if ins.wait_vm is not None: p.append(f"vmcnt({ins.wait_vm})")
            if ins.wait_lgkm is not None: p.append(f"lgkmcnt({ins.wait_lgkm})")
            out.append("    s_waitcnt " + " ".join(p))
        out.append("    " + ins.text)
    return "\n".join(out)

def stats(seq):
    import collections
    c = collections.Counter()
    for ins in flatten(seq):
        c[ins.kind] += 1
        c["autonop"] += ins.nops
        if ins.wait_vm is not None or ins.wait_lgkm is not None: c["autowait"] += 1
    return dict(c)
```

```python
from asmlib import *
from k2 import OFRAG_BYTES, WFRAG_OFF, WFRAG_BYTES, WS_USED
import struct, math

def f32bits(x): return struct.unpack("<I", struct.pack("<f", x))[0]
QSCALE = math.log2(math.e) / math.sqrt(128.0)
THR = 65536.0

SRD_X, SRD_W, SRD_K, SRD_V, SRD_WS, SRD_WO = S(8, 4), S(12, 4), S(16, 4), S(20, 4), S(24, 4), S(28, 4)
sW, sITEM, sB, sH = S(3), S(4), S(32), S(33)
sTHR, sKOFS, sVOFS, sSLOT, sCNT = S(35), S(36), S(37), S(38), S(39)
sRET = S(40, 2)
sT0, sT1, sT2, sT3 = S(42), S(43), S(46), S(47)
sSC = S(44, 2)
sXOFS, sWOFS, sQBD, sQBR, sDELTA = S(48), S(49), S(50), S(51), S(52)
sOBASE = S(53)
sQBS = S(66)
sKA = S(54, 2)
vLANE = V(1)
Qf = {"a": V(16, 32), "b": V(80, 32)}
ACC = {"a": V(16, 64), "b": V(80, 64), "c": V(144, 16)}
Sx = {"a": V(48, 16), "b": V(112, 16), "c": V(144, 16)}
NM = {"a": V(64, 16), "b": V(128, 16), "c": V(204, 16)}
Px = {"a": V(160, 8), "b": V(168, 8), "c": V(176, 8)}
QcF = [V(184, 4), V(188, 4), V(192, 4)]
E = [V(196 + i) for i in range(8)]
KR = [V(220 + i) for i in range(8)]
VR = [V(228 + i) for i in range(4)]
KD = [V(232 + i) for i in range(4)]
VD, QcR, OS = V(236), V(237), V(238)
Lx = {"a": V(239), "b": V(240), "c": V(241)}
Tx = {"a": V(242), "b": V(243), "c": V(244)}
XR = [V(160 + i) for i in range(4)]
WR = [V(164 + i) for i in range(4)]
XD = [V(168 + i) for i in range(4)]
WD = [V(172 + i) for i in range(4)]
TMP = [V(2 + i) for i in range(14)]
Ox = {"a": A(0, 64), "b": A(64, 64), "c": A(128, 64)}
def KF(s): return A(192 + 4 * s, 4)
def VF(dt, js): return A(224 + (js * 4 + dt) * 4, 4)
def WF(par, dt): return A(192 + par * 16 + dt * 4, 4)
def XF(par, t): return A(224 + par * 12 + t * 4, 4)
QB_SIZE = 53248
QC_OFF = 131072
WO_OFF = 139264
SM_OFF = 159744
LDS_TOTAL = 163840

def lane_consts(w):
    o = []; e = o.append
    t = TMP
    e(valu("v_and_b32", vLANE, 63, V(0)))
    e(valu("v_and_b32", t[0], 31, vLANE))
    e(valu("v_lshrrev_b32", t[1], 5, vLANE))
    e(valu("v_and_b32", t[2], 15, vLANE))
    e(valu("v_lshrrev_b32", t[3], 4, vLANE))
    e(valu("v_lshlrev_b32", t[4], 8, t[0]))
    for s in range(8):
        e(valu("v_add_u32", t[5], 2 * s, t[1]))
        e(valu("v_xor_b32", t[5], t[5], t[2]))
        e(valu("v_lshl_add_u32", KR[s], t[5], 4, t[4]))
    e(valu("v_bfe_u32", t[5], vLANE, 2, 2))
    e(valu("v_bfe_u32", t[6], vLANE, 4, 1))
    e(valu("v_and_b32", t[7], 3, vLANE))
    e(valu("v_lshl_add_u32", t[8], t[1], 2, t[5]))
    e(valu("v_lshlrev_b32", t[8], 8, t[8]))
    e(valu("v_lshl_add_u32", t[8], t[6], 5, t[8]))
    e(valu("v_lshl_add_u32", t[8], t[7], 3, t[8]))
    for dt in range(4):
        e(valu("v_xor_b32", t[9], dt, t[5]))
        e(valu("v_lshl_add_u32", VR[dt], t[9], 6, t[8]))
    e(valu("v_lshlrev_b32", t[8], 8, t[3]))
    e(valu("v_add_u32", t[8], w * 4096, t[8]))
    for i in range(4):
        e(valu("v_add_u32", t[9], 4 * i, t[3]))
        e(valu("v_xor_b32", t[9], t[9], t[2]))
        e(valu("v_lshl_add_u32", KD[i], t[9], 4, t[8]))
    e(valu("v_lshlrev_b32", t[9], 2, t[3]))
    e(valu("v_xor_b32", t[9], t[9], t[2]))
    e(valu("v_lshl_add_u32", VD, t[9], 4, t[8]))
    e(valu("v_lshlrev_b32", QcR, 4, vLANE))
    e(valu("v_add_u32", QcR, QC_OFF, QcR))
    e(valu("v_bfe_u32", t[9], vLANE, 4, 1))
    e(valu("v_lshlrev_b32", OS, 10, t[9]))
    e(valu("v_lshl_add_u32", OS, t[1], 8, OS))
    e(valu("v_lshl_add_u32", OS, t[2], 4, OS))
    return o

def qproj_consts(w):
    o = []; e = o.append
    t = TMP
    e(valu("v_and_b32", t[0], 31, vLANE))
    e(valu("v_lshrrev_b32", t[1], 5, vLANE))
    e(valu("v_and_b32", t[2], 15, vLANE))
    e(valu("v_lshrrev_b32", t[3], 4, vLANE))
    e(valu("v_bfe_u32", t[4], vLANE, 1, 3))
    e(valu("v_lshlrev_b32", t[5], 7, t[0]))
    for ks in range(4):
        e(valu("v_add_u32", t[6], 2 * ks, t[1]))
        e(valu("v_xor_b32", t[6], t[6], t[4]))
        e(valu("v_lshl_add_u32", XR[ks], t[6], 4, t[5]))
    e(valu("v_bfe_u32", t[5], vLANE, 2, 2))
    e(valu("v_bfe_u32", t[6], vLANE, 4, 1))
    e(valu("v_and_b32", t[7], 1, vLANE))
    e(valu("v_bfe_u32", t[8], vLANE, 1, 1))
    e(valu("v_lshl_add_u32", t[7], t[7], 1, t[8]))
    e(valu("v_lshl_add_u32", t[8], t[1], 3, t[5]))
    e(valu("v_lshlrev_b32", t[8], 8, t[8]))
    e(valu("v_lshl_add_u32", t[8], t[6], 5, t[8]))
    e(valu("v_lshl_add_u32", t[8], t[7], 3, t[8]))
    for dt in range(4):
        e(valu("v_xor_b32", t[9], dt, t[5]))
        e(valu("v_lshl_add_u32", WR[dt], t[9], 6, t[8]))
    e(valu("v_lshrrev_b32", t[5], 3, vLANE))
    e(valu("v_mul_u32_u24", t[5], 1280, t[5]))
    e(valu("v_and_b32", t[6], 7, vLANE))
    for k in range(4):
        e(valu("v_add_u32", t[7], 4 * (k & 1), t[3]))
        e(valu("v_xor_b32", t[7], t[7], t[6]))
        e(valu("v_lshl_add_u32", XD[k], t[7], 4, t[5]))
        if k: e(valu("v_add_u32", XD[k], k * 9216, XD[k]))
    e(valu("v_lshlrev_b32", t[5], 13, t[3]))
    e(valu("v_lshlrev_b32", t[6], 2, t[3]))
    e(valu("v_xor_b32", t[6], t[6], t[2]))
    e(valu("v_lshl_add_u32", WD[0], t[6], 4, t[5]))
    for k in range(1, 4):
        e(valu("v_add_u32", WD[k], k * 31744, WD[0]))
    return o

def qchunk_dma(w):
    o = []; e = o.append
    for gi in (w, 4 + w):
        e(salu("s_add_u32", "m0", sQBD, gi * 4096))
        e(salu("s_add_u32", sT0, sXOFS, gi * 40960))
        for k in range(4): e(dma(XD[k], SRD_X, sT0, k * 1024))
    e(salu("s_add_u32", "m0", sQBD, 8 * 4096))
    e(salu("s_add_u32", sT0, sXOFS, 8 * 40960))
    e(dma(XD[w], SRD_X, sT0, w * 1024))
    e(salu("s_add_u32", "m0", sQBD, 36864 + w * 4096))
    e(salu("s_add_u32", sT0, sWOFS, w * 131072))
    for k in range(4): e(dma(WD[k], SRD_W, sT0, k * 1024))
    e(salu("s_add_u32", sXOFS, sXOFS, 128))
    e(salu("s_add_u32", sWOFS, sWOFS, 64 * 8192))
    e(salu("s_add_u32", sQBD, sQBD, QB_SIZE))
    e(raw(f"s_cmp_ge_u32 {sQBD}, {3*QB_SIZE}", rd=sQBD.regs()))
    e(raw(f"s_cselect_b32 {sQBD}, 0, {sQBD}", rd=sQBD.regs(), wr=sQBD.regs()))
    return o

def q_reads(w, ks):
    par = ks % 2
    tiles = (2 * w, 2 * w + 1, 8)
    R_ = []
    def wf(dt):
        return [ds_read("tr", WF(par, dt).sub(2 * h, 2), WR[dt], 36864 + ks * 4096 + h * 1024) for h in range(2)]
    R_ += wf(0)
    R_.append(ds_read(128, XF(par, 0), XR[ks], tiles[0] * 4096))
    R_.append(ds_read(128, XF(par, 1), XR[ks], tiles[1] * 4096))
    R_ += wf(1) + wf(2) + wf(3)
    R_.append(ds_read(128, XF(par, 2), XR[ks], tiles[2] * 4096))
    return R_

def q_mfmas(w, ks, first):
    par = ks % 2
    M = []
    for dt in range(4):
        for ti, t in enumerate("ab"):
            D = ACC[t].sub(16 * dt, 16)
            M.append(mfma32(D, WF(par, dt), XF(par, ti), 0 if first else D))
    D = ACC["c"]
    M.append(mfma32(D, WF(par, w), XF(par, 2), 0 if first else D))
    return M

def interleave(ms, fill, start=0):
    out = []
    n = len(fill); m = len(ms) - start
    pos = [start + int(k * m / max(n, 1)) for k in range(n)]
    li = 0
    for k, x in enumerate(ms):
        out.append(x)
        while li < n and pos[li] <= k:
            out.append(fill[li]); li += 1
    out += fill[li:]
    return out

def q_addr_update():
    o = [salu("s_add_u32", sQBR, sQBR, QB_SIZE),
         raw(f"s_cmp_ge_u32 {sQBR}, {3*QB_SIZE}", rd=sQBR.regs()),
         raw(f"s_cselect_b32 {sDELTA}, {(-2*QB_SIZE) & 0xffffffff:#x}, {sQBS}", wr=sDELTA.regs()),
         raw(f"s_cselect_b32 {sQBR}, 0, {sQBR}", rd=sQBR.regs(), wr=sQBR.regs())]
    for r in XR + WR:
        o.append(valu("v_add_u32", r, sDELTA, r))
    return o

def q_segment(w, c, dma_ops, extra=None):
    o = []
    extra = list(extra or [])
    if c <= 9:
        if c > 0: o += q_addr_update()
        o.append(wait(vm=13 if c < 9 else 0, lgkm=0) if True else None)
        o.append(barrier())
    fill_all = list(dma_ops) + extra
    nparts = (1 if c > 0 else 0) + (3 if c <= 9 else 0)
    per = [fill_all[i * len(fill_all) // nparts:(i + 1) * len(fill_all) // nparts] for i in range(nparts)]
    pi = 0
    if c > 0:
        rd = q_reads(w, 0) if c <= 9 else []
        o += interleave(q_mfmas(w, 3, False), merge(rd, per[pi])); pi += 1
    else:
        o += q_reads(w, 0)
    if c <= 9:
        for ks in range(3):
            o += interleave(q_mfmas(w, ks, c == 0 and ks == 0), merge(q_reads(w, ks + 1), per[pi])); pi += 1
    return o

def merge(a, b):
    out = []; ia = ib = 0
    na, nb = len(a), len(b)
    while ia < na or ib < nb:
        if ib >= nb or (ia < na and ia * max(nb, 1) <= ib * max(na, 1)):
            out.append(a[ia]); ia += 1
        else:
            out.append(b[ib]); ib += 1
    return out

def page_dma(w, first=False):
    o = []; e = o.append
    e(salu("s_add_u32", "m0", sSLOT, w * 4096))
    for i in range(4): e(dma(KD[i], SRD_K, sKOFS, i * 1024))
    if first:
        if w >= 2:
            e(salu("s_add_u32", "m0", sSLOT, 16384 + w * 4096))
            e(valu("v_subrev_u32", TMP[0], 8192, VD))
            for i in range(4): e(dma(TMP[0], SRD_V, 0, i * 1024))
        e(s_mov(sVOFS, 8192))
    else:
        e(salu("s_add_u32", "m0", sSLOT, 16384 + w * 4096))
        for i in range(4): e(dma(VD, SRD_V, sVOFS, i * 1024))
        e(salu("s_add_u32", sVOFS, sVOFS, 16384))
    e(salu("s_add_u32", sKOFS, sKOFS, 16384))
    e(salu("s_add_u32", sSLOT, sSLOT, 32768))
    e(salu("s_and_b32", sSLOT, sSLOT, 0x1ffff))
    return o

def qk(t, s, first=False):
    B = Qf[t].sub(4 * s, 4) if t != "c" else QcF[s % 3]
    C = (0 if first else NM[t]) if s == 0 else Sx[t]
    return mfma32(Sx[t], KF(s), B, C)
def pv(t, idx):
    js, dt = divmod(idx, 4)
    D = Ox[t].sub(16 * dt, 16)
    return mfma32(D, VF(dt, js), Px[t].sub(4 * js, 4), D)

def unit(t, k):
    o = []
    if k < 16: o.append(v_exp(E[k % 4], Sx[t][k]))
    if k == 2: o.append(v_add_f32(Tx[t], E[0], E[1]))
    elif k > 2: o.append(v_add_f32(Tx[t], Tx[t], E[(k - 1) % 4]))
    if k >= 2 and k % 2 == 0: o.append(cvt_pk(Px[t][k // 2 - 1], E[(k - 2) % 4], E[(k - 1) % 4]))
    return o
SITE = [0]
STUBS = []
def check(w, t):
    SITE[0] += 1
    n = SITE[0]
    STUBS.append((w, f"FX{n}", t))
    return [v_cmp("v_cmp_lt_f32", sTHR, Tx[t]),
            Ins(f"s_cbranch_vccnz FX{n}", "branch", regs_of("vcc")),
            label(f"FX{n}_RET:"[:-1]),
            v_add_f32(Lx[t], Lx[t], Tx[t])]

def first_block(t):
    o = []; e = o.append
    m, m2 = TMP[0], TMP[1]
    s = Sx[t]
    e(v_max3(m, s[0], s[1], s[2]))
    for k in range(3, 15, 2): e(v_max3(m, m, s[k], s[k + 1]))
    e(v_max_f32(m, m, s[15]))
    e(v_mov(m2, m))
    e(permswap(m, m2))
    e(v_max_f32(m, m, m2))
    for k in range(16): e(v_sub_f32(NM[t][k], 0, m))
    for k in range(16): e(v_sub_f32(s[k], s[k], m))
    return o

def fix_routine(t):
    o = []; e = o.append
    e(label(f"FIX_{t}"))
    e(nop(16)); e(nop(16))
    m, m2, sc = TMP[0], TMP[1], TMP[2]
    s = Sx[t]
    e(v_max3(m, s[0], s[1], s[2]))
    for k in range(3, 15, 2): e(v_max3(m, m, s[k], s[k + 1]))
    e(v_max_f32(m, m, s[15]))
    e(v_mov(m2, m))
    e(permswap(m, m2))
    e(v_max_f32(m, m, m2))
    e(v_max_f32(m, 0, m))
    e(v_sub_f32(sc, 0, m))
    e(v_exp(sc, sc))
    for k in range(16): e(v_sub_f32(NM[t][k], NM[t][k], m))
    for k in range(64):
        x = TMP[4 + k % 4]
        e(acc_rd(x, Ox[t][k])); e(v_mul_f32(x, x, sc)); e(acc_wr(Ox[t][k], x))
    e(v_mul_f32(Lx[t], Lx[t], sc))
    for k in range(16): e(v_sub_f32(s[k], s[k], m))
    for k in range(0, 16, 2):
        a, b = TMP[4 + (k % 4)], TMP[5 + (k % 4)]
        e(v_exp(a, s[k])); e(v_exp(b, s[k + 1]))
        e(nop(1))
        if k == 0: e(v_add_f32(Tx[t], a, b))
        else:
            e(v_add_f32(Tx[t], Tx[t], a)); e(v_add_f32(Tx[t], Tx[t], b))
        e(cvt_pk(Px[t][k // 2], a, b))
    e(nop(4))
    e(raw(f"s_setpc_b64 {sRET}", kind="branch"))
    analyze(o)
    return o

def k_reads(u):
    off = {0: 8192, 1: 32768, 2: 32768 + 8192, 3: 0}[u]
    return [ds_read(128, KF(s), KR[s], off) for s in range(8)]
def v_reads(u):
    off = {0: 24576, 1: 32768 + 16384, 2: 32768 + 24576, 3: 16384}[u]
    R_ = []
    for idx in range(8):
        js, dt = divmod(idx, 4)
        R_.append([ds_read("tr", VF(dt, js).sub(2 * h, 2), VR[dt], off + js * 4096 + h * 2048) for h in range(2)])
    return R_

def iteration(w, u, typ, carry, j0=False, j1=False, cfirst=False, tail=False, noc_prev=False, dma_ok=True):
    M = []
    def add(lst): M.extend(lst)
    a_qk = [qk("a", s, j0) for s in range(8)]
    b_qk = [qk("b", s, j0) for s in range(8)]
    a_pv = [pv("a", i) for i in range(8)]
    b_pv = [pv("b", i) for i in range(8)]
    c_qk = [qk("c", s, cfirst) for s in range(8)]
    c_pv = [pv("c", i) for i in range(8)]
    none8 = [None] * 8
    if tail: a_qk = b_qk = none8
    if j0: a_pv = b_pv = none8
    if typ == "N":
        add(a_qk); add(a_pv); add(b_qk); add(b_pv)
        s_qkb, s_pvb = 16, 24
    elif typ == "Q":
        add(a_qk); add(a_pv); add(c_qk); add(b_qk); add(b_pv)
        s_qkb, s_pvb = 24, 32
    else:
        add(a_qk); add(a_pv); add(b_qk); add(c_pv); add(b_pv)
        s_qkb, s_pvb = 16, 32
    n = len(M)
    F = [[] for _ in range(n + 4)]
    for k, c in enumerate(carry): F[k] += c
    def place_stream(t, k0, k1, slot0):
        for k in range(k0, k1):
            F[slot0 + k - k0] += unit(t, k)
    if not j0:
        place_stream("b", 0, 16, 0)
        F[16] += unit("b", 16)
        F[17] += check(w, "b")
    if typ == "N":
        if not tail:
            if j0: F[10] += first_block("a")
            place_stream("a", 0, 16, 16)
            if j0:
                F[27] += first_block("b")
            F[32] += unit("a", 16); F[33] += check(w, "a")
    elif typ == "Q":
        if j0: F[10] += first_block("a")
        place_stream("a", 0, 16, 16)
        F[32] += unit("a", 16); F[33] += check(w, "a")
        if j0: F[35 - 1] = first_block("b") + F[35 - 1]
        if cfirst: F[31] += [nop(12)] + first_block("c")
        place_stream("c", 0, 8, 32)
        F[40] += unit("c", 8)[1:]
        for s in range(8):
            F[12 + s if s >= 3 else 9 + s] += [ds_read(128, QcF[s % 3], QcR, s * 1024)] if s < 3 else []
            if s >= 3: F[16 + s - 2] += [ds_read(128, QcF[s % 3], QcR, s * 1024)]
    else:
        F[16] += [unit("c", 8)[0]]
        place_stream("c", 9, 16, 17)
        F[24] = unit("c", 16) + check(w, "c") + F[24]
        if not tail:
            place_stream("a", 0, 16, 24)
            F[40] += unit("a", 16); F[41] += check(w, "a")
    if not tail:
        kr = k_reads(u)
        bar = []
        if u % 2 == 1:
            bar = [wait(vm=16), barrier()]
        F[s_qkb + 1] += bar
        for s in range(8): F[s_qkb + 1 + s] += [kr[s]]
        vr = v_reads(u)
        for i in range(8): F[s_pvb + 1 + i] += vr[i]
        if u % 2 == 0 and dma_ok:
            d = page_dma(w)
            for k, x in enumerate(d):
                F[1 + (k * 13) // len(d)] += [x]
        if u == 3:
            for k, r in enumerate(KR + VR):
                F[2 + k] += [valu("v_xor_b32", r, 65536, r)]
    out = []
    for k in range(n):
        if M[k] is not None: out.append(M[k])
        out += F[k]
    return out, F[n:]

def types_for(w):
    ty = ["N"] * 4
    ty[w] = "Q"; ty[(w + 1) % 4] = "P"
    return ty

def txt(lsts): return [[i.text for i in l] for l in lsts]

def epilogue(w):
    o = []; e = o.append
    t = TMP
    for x in "abc":
        e(v_mov(t[0], Lx[x])); e(permswap(Lx[x], t[0])); e(v_add_f32(Lx[x], Lx[x], t[0]))
    e(valu("v_and_b32", t[0], 31, vLANE))
    e(valu("v_lshlrev_b32", t[0], 2, t[0]))
    e(valu("v_add_u32", t[0], SM_OFF, t[0]))
    e(v_sub_f32(t[1], 0, NM["c"][0]))
    e(ds_write(32, t[0], t[1], w * 256))
    e(ds_write(32, t[0], Lx["c"], w * 256 + 128))
    e(wait(lgkm=0)); e(barrier())
    Mv = [V(48 + i) for i in range(4)]; Lv = [V(52 + i) for i in range(4)]
    for i in range(4):
        e(ds_read(32, Mv[i], t[0], i * 256)); e(ds_read(32, Lv[i], t[0], i * 256 + 128))
    for x in "ab":
        e(v_rcp(Lx[x], Lx[x]))
    def store_tile(x, tile):
        for dt in range(4):
            e(salu("s_add_u32", sT0, sOBASE, dt * 147456 + tile * 2048))
            for xx in range(2):
                tm = V(112 + (dt * 2 + xx) % 2 * 12, 8); pk = V(120 + (dt * 2 + xx) % 2 * 12, 4)
                for r in range(8): e(acc_rd(tm[r], Ox[x][16 * dt + 8 * xx + r]))
                for r in range(8): e(v_mul_f32(tm[r], tm[r], Lx[x]))
                for r in range(4): e(cvt_pk(pk[r], tm[2 * r], tm[2 * r + 1]))
                e(buf_store(4, pk, OS, SRD_WS, sT0, xx * 512))
    store_tile("a", 2 * w); store_tile("b", 2 * w + 1)
    mx, g = t[2], t[3]
    e(v_max3(mx, Mv[0], Mv[1], Mv[2])); e(v_max_f32(mx, mx, Mv[3]))
    for i in range(4):
        e(v_sub_f32(Mv[i], Mv[i], mx)); e(v_exp(Mv[i], Mv[i]))
    e(v_mul_f32(g, Mv[0], Lv[0]))
    for i in range(1, 4): e(valu("v_fma_f32", g, Mv[i], Lv[i], g))
    e(v_rcp(g, g)); e(v_mul_f32(g, g, Mv[w]))
    e(valu("v_lshlrev_b32", t[4], 4, vLANE))
    own = V(64, 16)
    for dt in range(4):
        for r4 in range(4):
            tm = own.sub(4 * r4, 4) if dt == w else V(112 + (r4 % 2) * 4, 4)
            for r in range(4): e(acc_rd(tm[r], Ox["c"][16 * dt + 4 * r4 + r]))
            for r in range(4): e(v_mul_f32(tm[r], tm[r], g))
            if dt != w:
                e(ds_write(128, t[4], tm, ((dt * 3 + ((w ^ dt) - 1)) * 4 + r4) * 1024))
    e(wait(lgkm=0)); e(barrier())
    rd = V(80, 48)
    for sp in range(3):
        for r4 in range(4):
            e(ds_read(128, rd.sub((sp * 4 + r4) * 4, 4), t[4], ((w * 3 + sp) * 4 + r4) * 1024))
    for sp in range(3):
        for r in range(16): e(v_add_f32(own[r], own[r], rd[sp * 16 + r]))
    e(salu("s_add_u32", sT0, sOBASE, w * 147456 + 8 * 2048))
    for xx in range(2):
        pk = V(128 + 4 * xx, 4)
        for r in range(4): e(cvt_pk(pk[r], own[8 * xx + 2 * r], own[8 * xx + 2 * r + 1]))
        e(buf_store(4, pk, OS, SRD_WS, sT0, xx * 512))
    return o

def wo_job(w):
    o = []; e = o.append
    t = TMP
    e(salu("s_mul_i32", sT0, sH, 128 * 1280)); e(salu("s_mul_i32", sT1, sB, 160)); e(salu("s_add_u32", sT0, sT0, sT1))
    e(salu("s_add_u32", sT0, sT0, w * 32 * 1280))
    e(s_mov(sT1, 6554))
    for k in range(5):
        e(valu("v_add_u32", t[0], 64 * k, vLANE))
        e(valu("v_mul_lo_u32", t[1], t[0], sT1))
        e(valu("v_lshrrev_b32", t[1], 16, t[1]))
        e(valu("v_mul_u32_u24", t[2], 10, t[1]))
        e(valu("v_sub_u32", t[2], t[0], t[2]))
        e(valu("v_mul_u32_u24", t[1], 1280, t[1]))
        e(valu("v_lshl_add_u32", t[3 + k], t[2], 4, t[1]))
        if k: e(valu("v_subrev_u32", t[3 + k], 0, t[3 + k]))
    for k in range(5):
        e(s_mov("m0", WO_OFF + w * 5120 + k * 1024))
        e(dma(t[3 + k], SRD_WO, sT0))
    e(wait(vm=0))
    e(valu("v_lshrrev_b32", t[0], 5, vLANE))
    e(valu("v_bfe_u32", t[1], vLANE, 4, 1))
    e(valu("v_bfe_u32", t[2], vLANE, 2, 2))
    e(valu("v_lshl_add_u32", t[2], t[1], 2, t[2]))
    e(valu("v_lshl_add_u32", t[2], t[0], 4, t[2]))
    e(valu("v_mul_u32_u24", t[2], 160, t[2]))
    e(valu("v_and_b32", t[1], 3, vLANE))
    e(valu("v_lshl_add_u32", t[2], t[1], 3, t[2]))
    e(valu("v_add_u32", t[2], WO_OFF + w * 5120, t[2]))
    fr = V(112, 20)
    for nt in range(5):
        for h in range(2):
            e(ds_read("tr", fr.sub(4 * nt + 2 * h, 2), t[2], nt * 32 + h * 8 * 160))
    e(salu("s_lshl_b32", sT0, sITEM, 7)); e(salu("s_lshl_b32", sT1, sH, 2)); e(salu("s_add_u32", sT0, sT0, sT1))
    e(salu("s_add_u32", sT0, sT0, w)); e(salu("s_mul_i32", sT0, sT0, 40)); e(salu("s_mul_i32", sT1, sB, 5))
    e(salu("s_add_u32", sT0, sT0, sT1)); e(salu("s_lshl_b32", sT0, sT0, 10)); e(salu("s_add_u32", sT0, sT0, WFRAG_OFF))
    e(valu("v_lshlrev_b32", t[0], 4, vLANE))
    e(valu("v_add_u32", t[1], 4096, t[0]))
    for nt in range(5):
        e(buf_store(4, fr.sub(4 * nt, 4), t[0] if nt < 4 else t[1], SRD_WS, sT0, (nt % 4) * 1024))
    return o

def srd(dst, lo, hi, size):
    return [s_mov(dst[0], lo), s_mov(dst[1], hi), s_mov(dst[2], size), s_mov(dst[3], 0x20000)]

def wave_code(w, DEBUG=None):
    o = []; e = o.append
    P = f"W{w}"
    o += lane_consts(w)
    e(label(f"{P}_ITEM"))
    e(salu("s_mul_i32", sT0, sITEM, 40))
    e(salu("s_add_u32", sKA[0], S(0), sT0)); e(salu("s_addc_u32", sKA[1], S(1), 0))
    e(raw(f"s_load_dwordx4 s[56:59], {sKA}, 0", wr=S(56, 4).regs()))
    e(raw(f"s_load_dwordx4 s[60:63], {sKA}, 16", wr=S(60, 4).regs()))
    e(raw(f"s_load_dwordx2 s[64:65], {sKA}, 32", wr=S(64, 2).regs()))
    o += qproj_consts(w)
    e(wait(lgkm=0))
    e(salu("s_mul_i32", sT0, sB, 368640))
    e(salu("s_add_u32", S(8), S(56), sT0)); e(salu("s_addc_u32", S(9), S(57), 0)); e(s_mov(S(10), 368640)); e(s_mov(S(11), 0x20000))
    e(salu("s_lshl_b32", sT0, sH, 8))
    e(salu("s_add_u32", S(12), S(62), sT0)); e(salu("s_addc_u32", S(13), S(63), 0))
    e(salu("s_sub_u32", S(14), 640 * 8192, sT0)); e(s_mov(S(15), 0x20000))
    e(salu("s_lshl_b32", sT0, sB, 5)); e(salu("s_add_u32", sT0, sT0, sH)); e(salu("s_lshl_b32", sT0, sT0, 18))
    e(salu("s_add_u32", S(16), S(58), sT0)); e(salu("s_addc_u32", S(17), S(59), 0)); e(s_mov(S(18), 262144)); e(s_mov(S(19), 0x20000))
    e(salu("s_add_u32", S(20), S(60), sT0)); e(salu("s_addc_u32", S(21), S(61), 0)); e(s_mov(S(22), 262144)); e(s_mov(S(23), 0x20000))
    o += srd(SRD_WO, S(64), S(65), 4096 * 1280)
    e(salu("s_lshl_b32", sT0, sITEM, 7)); e(salu("s_lshl_b32", sT1, sH, 2)); e(salu("s_add_u32", sT0, sT0, sT1))
    e(salu("s_mul_i32", sT0, sT0, 144)); e(salu("s_mul_i32", sT1, sB, 18)); e(salu("s_add_u32", sT0, sT0, sT1))
    e(salu("s_lshl_b32", sOBASE, sT0, 10))
    e(s_mov(sXOFS, 0)); e(s_mov(sWOFS, 0)); e(s_mov(sQBD, 0)); e(s_mov(sQBR, 0))
    o += qchunk_dma(w); o += qchunk_dma(w)
    zero_o = [acc_wr(Ox[x][r], 0) for x in "abc" for r in range(64)]
    o += q_segment(w, 0, qchunk_dma(w))
    body = [label(f"{P}_QL")] + q_segment(w, 1, qchunk_dma(w)) + [
        salu("s_sub_u32", sCNT, sCNT, 1), raw(f"s_cmp_lg_u32 {sCNT}, 0", rd=sCNT.regs()), branch("s_cbranch_scc1", f"{P}_QL")]
    e(s_mov(sCNT, 7))
    o.append(Loop(body))
    seg8 = q_segment(w, 8, [], zero_o[:96])
    o += seg8
    o += q_segment(w, 9, [], zero_o[96:])
    o += q_segment(w, 10, [])
    e(wait(lgkm=0)); e(barrier())
    e(s_mov(sKOFS, 0)); e(s_mov(sSLOT, 0))
    o += page_dma(w, first=True); o += page_dma(w); o += page_dma(w)
    npage0 = 8 if w >= 2 else 4
    for x in "abc":
        n = ACC[x].n
        for r in range(0, n, 2):
            e(valu("v_pk_mul_f32", ACC[x].sub(r, 2), ACC[x].sub(r, 2), sSC))
        for r in range(n // 2):
            dst = Qf[x][r] if x != "c" else V(184 + r)
            e(cvt_pk(dst, ACC[x][2 * r], ACC[x][2 * r + 1]))
    for xx in range(2):
        e(ds_write(128, QcR, V(184 + 4 * xx, 4), (2 * w + xx) * 1024))
    for x in "abc": e(v_mov(Lx[x], 0))
    if DEBUG == "q":
        e(valu("v_lshlrev_b32", TMP[0], 4, vLANE))
        e(salu("s_lshl_b32", sT0, S(2), 2)); e(salu("s_add_u32", sT0, sT0, w)); e(salu("s_mul_i32", sT0, sT0, 16384))
        e(salu("s_add_u32", sT0, sT0, 64 << 20))
        for ti, x in enumerate("ab"):
            for s in range(8):
                e(salu("s_add_u32", sT1, sT0, (ti * 8 + s) * 1024))
                e(buf_store(4, Qf[x].sub(4 * s, 4), TMP[0], SRD_WS, sT1))
    e(wait(vm=16, lgkm=0)); e(barrier())
    e(valu("v_nop0", None) if False else nop(1))
    o += k_reads(3)
    ty = types_for(w)
    carry = []
    for u in range(4):
        typ = ty[u]
        if typ == "P" and u == 0: typ = "N"
        ins, carry = iteration(w, u, typ, carry, j0=(u == 0), cfirst=(typ == "Q"))
        o += ins
    carry_peel = carry
    body = [label(f"{P}_AL")]
    carry_in = carry_peel
    for u in range(4):
        ins, carry_in = iteration(w, u, ty[u], carry_in)
        body += ins
    assert [[t for t in l if "FX" not in t] for l in txt(carry_in)] == [[t for t in l if "FX" not in t] for l in txt(carry_peel)]
    body += [salu("s_sub_u32", sCNT, sCNT, 1), raw(f"s_cmp_lg_u32 {sCNT}, 0", rd=sCNT.regs()), branch("s_cbranch_scc1", f"{P}_AL")]
    e(s_mov(sCNT, 7))
    o.append(Loop(body))
    typ = "P" if ty[0] == "P" else "N"
    ins, carry = iteration(w, 0, typ, carry_in, tail=True)
    o += ins
    for c in carry: o += c
    o += epilogue(w)
    e(wait(lgkm=0)); e(barrier())
    o += wo_job(w)
    e(wait(vm=0, lgkm=0)); e(barrier())
    e(salu("s_add_u32", sITEM, sITEM, 1))
    e(raw(f"s_cmp_lt_u32 {sITEM}, 2", rd=sITEM.regs()))
    e(branch("s_cbranch_scc1", f"{P}_ITEM"))
    e(branch("s_branch", "K1_END"))
    analyze(o)
    return o

def gen_k1(name="attn_kernel", DEBUG=None):
    SITE[0] = 0; STUBS.clear()
    q = []; e = q.append
    e(label(name))
    e(raw("s_cmp_ge_u32 s2, 256")); e(branch("s_cbranch_scc1", "K1_END"))
    e(raw("s_load_dwordx2 s[6:7], s[0:1], 96"))
    e(valu("v_lshrrev_b32", V(2), 6, V(0)))
    e(nop(1))
    e(rfl(sW, V(2)))
    e(salu("s_and_b32", sT0, S(2), 7)); e(salu("s_lshr_b32", sT1, S(2), 3))
    e(salu("s_and_b32", sB, sT0, 1)); e(salu("s_lshl_b32", sB, sB, 2)); e(salu("s_and_b32", sT2, sT1, 3)); e(salu("s_add_u32", sB, sB, sT2))
    e(salu("s_lshr_b32", sH, sT0, 1)); e(salu("s_lshl_b32", sH, sH, 3)); e(salu("s_lshr_b32", sT2, sT1, 2)); e(salu("s_add_u32", sH, sH, sT2))
    e(s_mov(sITEM, 0)); e(s_mov(sTHR, f32bits(THR))); e(s_mov(sQBS, QB_SIZE))
    e(s_mov(sSC[0], f32bits(QSCALE))); e(s_mov(sSC[1], f32bits(QSCALE)))
    e(wait(lgkm=0))
    for x in srd(SRD_WS, S(6), S(7), 290000000 if DEBUG else WS_USED): e(x)
    for w in range(1, 4):
        e(raw(f"s_cmp_eq_u32 {sW}, {w}")); e(branch("s_cbranch_scc1", f"WAVE{w}"))
    analyze(q)
    src = render(q) + "\n"
    codes = [wave_code(w, DEBUG) for w in range(4)]
    for w in range(4):
        src += f"WAVE{w}:\n" + render(codes[w]) + "\n"
    for (w, lab, t) in STUBS:
        src += f"{lab}:\n    s_call_b64 {sRET}, FIX_{t}\n    s_branch {lab}_RET\n"
    for t in "abc":
        src += render(fix_routine(t)) + "\n"
    src += "K1_END:\n    s_endpgm\n"
    return src, [stats(c) for c in codes]

def k1_desc(name):
    return f"""
.amdhsa_kernel {name}
  .amdhsa_next_free_vgpr 512
  .amdhsa_next_free_sgpr 80
  .amdhsa_accum_offset 256
  .amdhsa_group_segment_fixed_size 0
  .amdhsa_kernarg_size 104
  .amdhsa_user_sgpr_count 2
  .amdhsa_user_sgpr_kernarg_segment_ptr 1
  .amdhsa_system_sgpr_workgroup_id_x 1
.end_amdhsa_kernel
"""

if __name__ == "__main__":
    import sys
    dbg = sys.argv[1] if len(sys.argv) > 1 else None
    src, st = gen_k1(DEBUG=dbg)
    for s in st: print(s)
    full = f"; @launch kernel=attn_kernel grid=(256,1,1) block=(256,1,1) lds={LDS_TOTAL}\n"
    full += '.amdgcn_target "amdgcn-amd-amdhsa--gfx950"\n.text\n.globl attn_kernel\n.p2align 8\n.type attn_kernel,@function\n'
    full += src + '.section .rodata,"a"\n.p2align 6\n' + k1_desc("attn_kernel")
    open("k1.s", "w").write(full)
```

```python
from asmlib import *
import sys

OFRAG_BYTES = 2 * 128 * 144 * 1024
WFRAG_OFF = OFRAG_BYTES
WFRAG_BYTES = 2 * 128 * 40 * 1024
WS_USED = OFRAG_BYTES + WFRAG_BYTES
OUT_BYTES = 8 * 288 * 1280 * 2

def owner_lists():
    own = [[], [], [], []]
    for t in range(45):
        o = 0 if t < 12 else 1 if t < 23 else 2 if t < 34 else 3
        own[o].append(t)
    return own

def gen_k2(name="oproj_kernel", NS=4, TD=0, P="K2", SO=144*1024, SW=40*1024, NOMFMA=False, STAMP=False):
    q = []
    e = q.append
    SRD_WS, SRD_OUT = S(8, 4), S(12, 4)
    sw, sO, sW, sCnt, sT, sK = S(16), S(17), S(18), S(19), S(28), S(29)
    vl16, vl16b, vl16c = V(1), V(2), V(3)
    vT, vTs, vJ = V(8), V(9), V(10)
    def stage(st):
        if st < 4:
            b = 16 + 56 * st
            return [V(b + 4 * i, 4) for i in range(5)], [V(b + 20 + 4 * j, 4) for j in range(9)]
        b = 180 + 56 * (st - 4)
        return [A(b + 4 * i, 4) for i in range(5)], [A(b + 20 + 4 * j, 4) for j in range(9)]
    def acc(j, i): return A((j * 5 + i) * 4, 4)

    e(label(name))
    def stamp(i):
        if STAMP:
            e(raw(f"s_memrealtime s[{40+4*i}:{41+4*i}]")); e(raw(f"s_memtime s[{42+4*i}:{43+4*i}]"))
    stamp(0)
    e(raw("s_cmp_ge_u32 s2, 256"))
    e(branch("s_cbranch_scc1", f"{P}_END"))
    e(raw("s_load_dwordx2 s[4:5], s[0:1], 96", wr=S(4, 2).regs()))
    e(raw("s_load_dwordx2 s[6:7], s[0:1], 80", wr=S(6, 2).regs()))
    e(valu("v_lshrrev_b32", V(4), 6, V(0)))
    e(valu("v_and_b32", V(5), 63, V(0)))
    e(rfl(sw, V(4)))
    e(valu("v_lshlrev_b32", vl16, 4, V(5)))
    e(valu("v_add_u32", vl16b, 4096, vl16))
    e(valu("v_add_u32", vl16c, 8192, vl16))
    e(salu("s_and_b32", S(20), S(2), 7))
    e(salu("s_lshr_b32", S(21), S(2), 3))
    e(salu("s_lshr_b32", S(22), S(20), 2))
    e(salu("s_and_b32", S(23), S(20), 3))
    e(salu("s_lshl_b32", S(30), S(23), 2))
    e(salu("s_and_b32", S(24), S(21), 3))
    e(salu("s_add_u32", S(31), S(30), S(24)))
    e(salu("s_lshr_b32", S(24), S(21), 2))
    e(salu("s_lshl_b32", S(25), S(22), 7))
    e(salu("s_lshl_b32", S(26), sw, 5))
    e(salu("s_add_u32", S(25), S(25), S(26)))
    e(salu("s_mul_i32", sO, S(25), 144))
    e(salu("s_mul_i32", S(26), S(31), 9))
    e(salu("s_add_u32", sO, sO, S(26)))
    e(salu("s_lshl_b32", sO, sO, 10))
    e(salu("s_mul_i32", sW, S(25), 40))
    e(salu("s_mul_i32", S(26), S(24), 5))
    e(salu("s_add_u32", sW, sW, S(26)))
    e(salu("s_lshl_b32", sW, sW, 10))
    e(salu("s_add_u32", sW, sW, WFRAG_OFF))
    e(salu("s_mul_i32", S(27), S(31), 144 * 2560))
    e(salu("s_mul_i32", S(26), S(22), 1280))
    e(salu("s_add_u32", S(27), S(27), S(26)))
    e(salu("s_mul_i32", S(26), S(24), 160))
    e(salu("s_add_u32", S(27), S(27), S(26)))
    if TD:
        e(salu("s_mul_i32", S(26), S(21), 38))
        e(valu("v_add_u32", V(6), S(26), V(5)))
        e(valu("v_lshlrev_b32", V(7), 6, V(6)))
        e(salu("s_mul_i32", S(32), S(25), 144))
        e(salu("s_mul_i32", S(26), S(23), 36))
        e(salu("s_add_u32", S(32), S(32), S(26)))
        e(salu("s_lshl_b32", S(32), S(32), 10))
        e(salu("s_mul_i32", S(33), S(25), 40 * 1024))
        e(salu("s_add_u32", S(33), S(33), WFRAG_OFF - 576 * 64))
        e(valu("v_add_u32", V(11), S(32), V(7)))
        e(valu("v_add_u32", V(12), S(33), V(7)))
        e(v_cmp("v_cmp_gt_u32", 576, V(6)))
        e(valu("v_cndmask_b32", vT, V(12), V(11), "vcc"))
        e(v_mov(V(11), 147456)); e(v_mov(V(12), 40960))
        e(valu("v_cndmask_b32", vTs, V(12), V(11), "vcc"))
        e(v_cmp("v_cmp_gt_u32", 38, V(5)))
        e(v_mov(V(11), 0x7f000000))
        e(valu("v_cndmask_b32", vT, V(11), vT, "vcc"))
        e(valu("v_cndmask_b32", vTs, 0, vTs, "vcc"))
        e(s_mov(sT, 0))
        e(s_mov(sK, 0))
    e(wait(lgkm=0))
    e(s_mov(S(8), S(4))); e(s_mov(S(9), S(5))); e(s_mov(S(10), WS_USED)); e(s_mov(S(11), 0x20000))
    e(s_mov(S(12), S(6))); e(s_mov(S(13), S(7))); e(s_mov(S(14), OUT_BYTES)); e(s_mov(S(15), 0x20000))

    def loads(st):
        W, O = stage(st)
        L = []
        for i in range(5):
            L.append(buf_load(4, W[i], vl16 if i < 4 else vl16b, SRD_WS, sW, (i % 4) * 1024))
        for j in range(9):
            L.append(buf_load(4, O[j], (vl16, vl16b, vl16c)[j // 4], SRD_WS, sO, (j % 4) * 1024))
        return L
    def adv():
        return [salu("s_add_u32", sO, sO, SO), salu("s_add_u32", sW, sW, SW)]
    def touch():
        t = buf_load(1, vJ, vT, SRD_WS, sT)
        t.dst_async = set()
        return [t, valu("v_add_u32", vT, vT, vTs)]

    for st in range(NS - 1):
        for x in loads(st): e(x)
        for x in adv(): e(x)
        if TD: e(valu("v_add_u32", vT, vT, vTs))
    ntouch_pro = 0
    if TD:
        for k in range(NS - 1, TD):
            for x in touch(): e(x)
            ntouch_pro += 1
    for r in range(180):
        e(acc_wr(A(r), 0))

    LPS = 14 + (1 if TD else 0)
    def step(st, do_load, do_touch):
        W, O = stage(st)
        out = []
        L = []
        if do_touch:
            L += touch()
            L += [salu("s_add_u32", sK, sK, 1), raw(f"s_cmp_ge_u32 s29, {32 - TD}", rd=sK.regs()),
                  raw("s_cselect_b32 s28, 0x7f000000, 0", wr=sT.regs())]
        nt = len(L)
        if do_load: L += loads((st + NS - 1) % NS) + adv()
        ms = [mfma16(acc(j, i), W[i], O[j], acc(j, i)) for j in range(9) for i in range(5)]
        if NOMFMA: ms = [m if (k % 5 == 0) else nop(1) for k, m in enumerate(ms)]
        n = len(L)
        posn = [int((k + 0.5) * 45 / max(n, 1)) for k in range(n)]
        li = 0
        for k, m in enumerate(ms):
            out.append(m)
            while li < n and posn[li] <= k:
                out.append(L[li]); li += 1
        out += L[li:]
        return out

    body = []
    body.append(label(f"{P}_LOOP"))
    for st in range(NS):
        body.append(wait(vm=LPS * (NS - 2)))
        body += step(st, True, TD > 0)
    body.append(salu("s_sub_u32", sCnt, sCnt, 1))
    body.append(raw("s_cmp_lg_u32 s19, 0", rd=sCnt.regs()))
    body.append(branch("s_cbranch_scc1", f"{P}_LOOP"))
    nloop = (32 - NS) // NS
    assert nloop * NS <= 32 - NS
    e(s_mov(sCnt, nloop))
    stamp(1)
    e(Loop(body))
    k0 = nloop * NS
    for k in range(k0, 32):
        st = k % NS
        inflight = min(k + NS - 2, 31) - k
        ops = 0
        for kk in range(k + 1, min(k + NS - 2, 31) + 1):
            ops += 14
            issued_in = kk - (NS - 1)
            if TD and 0 <= issued_in < k0: ops += 1 if kk > k + 1 else 1
        e(wait(vm=max(ops - (1 if TD else 0), 0) if TD else ops))
        for x in step(st, k + NS - 1 <= 31, False): e(x)

    stamp(2)
    own = owner_lists()
    e(valu("v_and_b32", V(5), 63, V(0)))
    for o in range(4):
        e(salu("s_xor_b32", S(20), sw, o))
        e(salu("s_add_u32", S(20), S(20), o * 3))
        e(salu("s_sub_u32", S(20), S(20), 1))
        e(salu("s_mul_i32", S(20), S(20), 12 * 1024))
        e(valu("v_add_u32", V(8 + o), S(20), vl16))
    for o in range(4):
        e(raw(f"s_cmp_eq_u32 s16, {o}", rd=sw.regs()))
        e(branch("s_cbranch_scc1", f"{P}_SKIPW{o}"))
        for k, t in enumerate(own[o]):
            e(ds_write(128, V(8 + o), A(t * 4, 4), k * 1024))
        e(label(f"{P}_SKIPW{o}"))
    e(wait(vm=0, lgkm=0))
    e(barrier())
    e(valu("v_and_b32", V(6), 15, V(5)))
    e(valu("v_mul_u32_u24", V(6), 2560, V(6)))
    e(valu("v_lshrrev_b32", V(7), 4, V(5)))
    e(valu("v_lshlrev_b32", V(7), 3, V(7)))
    e(valu("v_add_u32", V(6), V(6), V(7)))
    for o in range(4):
        if o > 0:
            e(label(f"{P}_RD{o}"))
        if o < 3:
            e(raw(f"s_cmp_lg_u32 s16, {o}", rd=sw.regs()))
            e(branch("s_cbranch_scc1", f"{P}_RD{o+1}"))
        blk = []
        base = o * 3 * 12 * 1024
        blk.append(valu("v_add_u32", V(12), base, vl16))
        for k, t in enumerate(own[o]):
            for sp in range(3):
                blk.append(ds_read(128, V(16 + (k * 3 + sp) * 4, 4), V(12), (sp * 12 + k) * 1024))
        for k, t in enumerate(own[o]):
            j, i = divmod(t, 5)
            tmp = V(200 + (k % 4) * 4, 4)
            for r in range(4):
                blk.append(acc_rd(tmp[r], A(t * 4 + r)))
            for sp in range(3):
                src = V(16 + (k * 3 + sp) * 4, 4)
                for r in range(4):
                    blk.append(v_add_f32(tmp[r], tmp[r], src[r]))
            pk = V(220 + (k % 4) * 2, 2)
            blk.append(cvt_pk(pk[0], tmp[0], tmp[1]))
            blk.append(cvt_pk(pk[1], tmp[2], tmp[3]))
            blk.append(salu("s_add_u32", S(20), S(27), j * 40960))
            blk.append(buf_store(2, pk, V(6), SRD_OUT, S(20), i * 32))
        blk.append(branch("s_branch", f"{P}_FIN"))
        analyze(blk)
        e(raw(render(blk), kind="label"))
    e(label(f"{P}_FIN"))
    if STAMP:
        e(wait(vm=0))
        stamp(3)
        e(wait(lgkm=0))
        e(salu("s_lshl_b32", S(20), S(2), 2)); e(salu("s_add_u32", S(20), S(20), sw)); e(salu("s_lshl_b32", S(20), S(20), 6))
        e(salu("s_add_u32", S(20), S(20), 64 << 20))
        e(s_mov(S(10), 290000000))
        e(v_mov(V(1), 0))
        for i in range(16):
            e(v_mov(V(2), S(40 + i)))
            e(buf_store(1, V(2), V(1), SRD_WS, S(20), i * 4))
    e(label(f"{P}_END"))
    e(raw("s_endpgm", kind="branch"))
    analyze(q)
    return q

def k2_desc(name, NS):
    nv = 256 + 180 + (56 * (NS - 4) if NS > 4 else 0)
    return f"""
.amdhsa_kernel {name}
  .amdhsa_next_free_vgpr {nv}
  .amdhsa_next_free_sgpr 64
  .amdhsa_accum_offset 256
  .amdhsa_group_segment_fixed_size 0
  .amdhsa_kernarg_size 104
  .amdhsa_user_sgpr_count 2
  .amdhsa_user_sgpr_kernarg_segment_ptr 1
  .amdhsa_system_sgpr_workgroup_id_x 1
.end_amdhsa_kernel
"""

def write(fn, NS, TD, **kw):
    q = gen_k2(NS=NS, TD=TD, **kw)
    src = "; @launch kernel=oproj_kernel grid=(256,1,1) block=(256,1,1) lds=147456\n"
    src += '.amdgcn_target "amdgcn-amd-amdhsa--gfx950"\n.text\n.globl oproj_kernel\n.p2align 8\n.type oproj_kernel,@function\n'
    src += render(q) + "\n"
    src += '.section .rodata,"a"\n.p2align 6\n' + k2_desc("oproj_kernel", NS)
    open(fn, "w").write(src)
    return stats(q)

if __name__ == "__main__":
    write("k2_base.s", 4, 0, STAMP=True)
    write("k2_s0.s", 4, 0, SO=0, SW=0, STAMP=True)
    write("k2_nomfma_s0.s", 4, 0, NOMFMA=True, SO=0, SW=0, STAMP=True)
```

```python
import sys, k1, k2
from asmlib import *
NAME = "concat_heads__gqa_block_cached__mha_block_cached__near_ridge"
def build(fn, k1kw=None, k2kw=None):
    src1, st = k1.gen_k1(**(k1kw or {}))
    q2 = k2.gen_k2(**(k2kw or {}))
    NS = (k2kw or {}).get("NS", 4)
    ref = open(f"cdna_kernels/{NAME}.s.ref").read().splitlines()
    head = [l for l in ref if l.startswith(";") and "@launch" not in l and "Override launch" not in l and "grid=ceil" not in l]
    head = [l for l in head if l.startswith("; Kernarg") or l.startswith(";   offset")]
    s = "\n".join(head) + "\n"
    s += f"; @launch kernel=attn_kernel grid=(256,1,1) block=(256,1,1) lds={k1.LDS_TOTAL}\n"
    s += "; @launch kernel=oproj_kernel grid=(256,1,1) block=(256,1,1) lds=147456\n"
    s += '.amdgcn_target "amdgcn-amd-amdhsa--gfx950"\n.text\n'
    s += ".globl attn_kernel\n.p2align 8\n.type attn_kernel,@function\n" + src1
    s += ".globl oproj_kernel\n.p2align 8\n.type oproj_kernel,@function\n" + render(q2) + "\n"
    s += '.section .rodata,"a"\n.p2align 6\n' + k1.k1_desc("attn_kernel") + ".p2align 6\n" + k2.k2_desc("oproj_kernel", NS)
    open(fn, "w").write(s)
if __name__ == "__main__":
    build(sys.argv[1] if len(sys.argv) > 1 else f"cdna_kernels/{NAME}.s")
```
